```python
import torch

def _softmax(x, axis=-1):
    return torch.softmax(x, dim=axis)
def _gelu(x):
    return torch.nn.functional.gelu(x, approximate="tanh")
def _silu(x):
    return torch.nn.functional.silu(x)
def _sigmoid(x):
    return torch.sigmoid(x)
def _layernorm(x, axis=-1, eps=1e-5):
    m = x.mean(dim=axis, keepdim=True)
    v = x.var(dim=axis, keepdim=True, unbiased=False)
    return (x - m) / torch.sqrt(v + eps)
def _scatter_add(tgt, idx, src, axis=0):
    return tgt.clone().index_add_(axis, idx, src)
def _segment_sum(src, seg, n):
    out = torch.zeros((n,) + src.shape[1:], dtype=src.dtype)
    return out.index_add_(0, seg, src)
def _pad(x, pw):
    flat = tuple(v for pair in reversed(pw) for v in pair)
    return torch.nn.functional.pad(x, flat)

kernel_name = 'gated_mix__ssm_conv_h3__geglu_ffn__prompt'

def setup_inputs():

    _w = (lambda a: (lambda t: t.to(torch.bfloat16) if t.is_floating_point() else t)(torch.as_tensor(a)))
    def _A_setup():
        B, S, D = 1, 2048, 576
        ks = 4
        return {
            "q": _w((lambda *s: torch.randn(*s, dtype=torch.bfloat16) * 0.05)(B, S, D)),
            "k": _w((lambda *s: torch.randn(*s, dtype=torch.bfloat16) * 0.4)(B, S, D)),
            "v": _w((lambda *s: torch.randn(*s, dtype=torch.bfloat16) * 0.4)(B, S, D)),
            "shift_k": _w((lambda *s: torch.randn(*s, dtype=torch.bfloat16) * 0.4)(D, ks) * 0.5),
            "ssm_k": _w((lambda *s: torch.randn(*s, dtype=torch.bfloat16) * 0.4)(D, S) * (1.0 / S ** 0.5)),
            "ssm_D": _w((lambda *s: torch.randn(*s, dtype=torch.bfloat16) * 0.4)(D)),
        }
    _A_in = _A_setup()

    def _B_setup():
        B, S, D, F = 1, 2048, 576, 4608
        return {
            "x": _w((lambda *s: torch.randn(*s, dtype=torch.bfloat16) * 0.05)(B, S, D)),
            "w_gate": _w((lambda *s: torch.randn(*s, dtype=torch.bfloat16) * 0.05)(D, F)),
            "w_up": _w((lambda *s: torch.randn(*s, dtype=torch.bfloat16) * 0.05)(D, F)),
            "w_down": _w((lambda *s: torch.randn(*s, dtype=torch.bfloat16) * 0.05)(F, D)),
        }
    _B_in = _B_setup()

    return {
        "A_q": _A_in["q"],
        "A_k": _A_in["k"],
        "A_v": _A_in["v"],
        "A_shift_k": _A_in["shift_k"],
        "A_ssm_k": _A_in["ssm_k"],
        "A_ssm_D": _A_in["ssm_D"],
        "B_x": _B_in["x"],
        "B_w_gate": _B_in["w_gate"],
        "B_w_up": _B_in["w_up"],
        "B_w_down": _B_in["w_down"],
        "gate_w": _w((lambda *s: torch.randn(*s, dtype=torch.bfloat16) * 0.05)(576) * 16.0),
    }

def reference(A_q, A_k, A_v, A_shift_k, A_ssm_k, A_ssm_D, B_x, B_w_gate, B_w_up, B_w_down, gate_w):
    def _A_ref(q, k, v, shift_k, ssm_k, ssm_D):
        B, S, D = q.shape
        ks = shift_k.shape[-1]
        k_pad = _pad(k, ((0, 0), (ks - 1, 0), (0, 0)))
        k_shift = torch.zeros_like(k)
        for t in range(ks):
            k_shift = k_shift + k_pad[:, t:t + S, :] * shift_k[:, ks - 1 - t][None, None, :]
        kv = k_shift * v
        L = 2 * S
        kv_pad = _pad(kv, ((0, 0), (0, S), (0, 0)))
        kf_pad = _pad(ssm_k, ((0, 0), (0, S)))
        kv_f = (lambda x, axes=(-2,-1): torch.fft.rfft2(x.float(), dim=axes))(kv_pad[:, None, :, :], axes=(1, 2))
        kf_f = (lambda x, axes=(-2,-1): torch.fft.rfft2(x.float(), dim=axes))(kf_pad[:, None, :], axes=(1, 2))
        kf_f = (lambda x, *d: x.permute(*d))(kf_f, 1, 2, 0)
        y_f = kv_f * kf_f[None, :, :, :]
        y = (lambda x, s, axes=(-2,-1): torch.fft.irfft2(x, s=s, dim=axes).to(torch.bfloat16))(y_f, (1, L), axes=(1, 2))[:, 0, :S, :]
        y = y + kv * ssm_D[None, None, :]
        return q * y

    def _B_ref(x, w_gate, w_up, w_down):
        return (_gelu(x @ w_gate) * (x @ w_up)) @ w_down

    x = A_q
    g = _sigmoid((x * gate_w).sum(-1, keepdims=True))
    a = _A_ref(x, A_k, A_v, A_shift_k, A_ssm_k, A_ssm_D)
    b = _B_ref(x, B_w_gate, B_w_up, B_w_down)
    return g * a + (1 - g) * b
```

```python
class A:
    def __init__(self):
        self.l = []
    def __call__(self, s=""):
        for x in s.split("\n"):
            self.l.append(x)
    def text(self): return "\n".join(self.l) + "\n"

def kd(name, vgpr=256, sgpr=102, accum=256):
    return f""".section .rodata,"a"
.p2align 6
.amdhsa_kernel {name}
  .amdhsa_next_free_vgpr {vgpr}
  .amdhsa_next_free_sgpr {sgpr}
  .amdhsa_accum_offset {accum}
  .amdhsa_group_segment_fixed_size 0
  .amdhsa_kernarg_size 112
  .amdhsa_user_sgpr_count 2
  .amdhsa_user_sgpr_kernarg_segment_ptr 1
  .amdhsa_system_sgpr_workgroup_id_x 1
.end_amdhsa_kernel
.text
"""
def head(name):
    return f""".globl {name}
.p2align 8
.type {name},@function
{name}:"""
```

```python
import sys
from gen import kd, head
pats = sys.argv[1].split(",")
def ins(c, i, j):
    r = 100 + (i * 3 + j) % 24
    return {"V": f"v_fma_f32 v{r}, v{r}, v2, v3", "S": f"s_add_u32 s{40+j}, s{40+j}, 1", "D": f"ds_read_b128 v[{132+4*(i%8)}:{135+4*(i%8)}], v4 offset:{(i%8)*1024}",
            "T": f"v_exp_f32 v{r}, v{r}", "W": "s_waitcnt lgkmcnt(8)", "N": "s_nop 0", "C": f"v_cvt_pk_bf16_f32 v{r}, v2, v3", "v": f"v_mul_f32 v{r}, v{r}, v2",
            "w": f"ds_write_b64 v5, v[2:3] offset:{(i%8)*512}", "L": f"buffer_load_dwordx4 v[{170+4*(i%8)}:{173+4*(i%8)}], v4, s[4:7], 0 offen offset:{(i%4)*1024}",
            "R": f"ds_read_b64_tr_b16 a[{2*(i%32)}:{2*(i%32)+1}], v5 offset:{(i%8)*512}", "2": f"ds_read2_b64 v[{132+4*(i%8)}:{135+4*(i%8)}], v4 offset0:{(i%8)*16} offset1:{(i%8)*16+1}",
            "A": f"buffer_load_dwordx4 v4, s[4:7], 0 offen offset:{(i%4)*1024} lds", "B": "s_barrier", "4": f"buffer_load_dwordx4 v4, s[4:7], 2 offen offset:{(i%4)*1024} lds", "5": f"buffer_load_dwordx4 v4, s[4:7], 4 offen offset:{(i%4)*1024} lds", "6": f"buffer_load_dwordx4 v4, s[4:7], 8 offen offset:{(i%4)*1024} lds", "7": f"buffer_load_dwordx4 v4, s[4:7], 16 offen offset:{(i%4)*1024} lds", "8": f"ds_read_b128 v[{132+4*(i%8)}:{135+4*(i%8)}], v4 offset:{(i%8)*1024+2}", "9": f"ds_read_b128 v[{132+4*(i%8)}:{135+4*(i%8)}], v4 offset:{(i%8)*1024+4}", "0": f"ds_read_b128 v[{132+4*(i%8)}:{135+4*(i%8)}], v4 offset:{(i%8)*1024+8}", "q": f"ds_read_b64 v[{132+4*(i%8)}:{133+4*(i%8)}], v5 offset:{(i%8)*512+4}", "Q": f"ds_read_b64 v[{132+4*(i%8)}:{133+4*(i%8)}], v5 offset:{(i%8)*512+2}", "O": f"v_dot2_f32_bf16 v{r}, v48, v49, v{r}", "o": f"v_dot2c_f32_bf16 v{r}, v48, v49", "G": f"v_alignbit_b32 v{r}, v48, v49, 16", "t": f"ds_write_addtid_b32 v48 offset:{(i%8)*256}", "X": f"buffer_store_dwordx4 v[48:51], v4, s[4:7], 0 offen offset:{1024+(i%3)*1024} sc1", "x": "buffer_store_dword v48, v5, s[4:7], 0 offen offset:1024 sc1",
            "y": "buffer_store_dwordx2 v[48:49], v5, s[4:7], 0 offen offset:1024 sc1", "J": "s_cbranch_vccnz Lend", "3": f"ds_read2st64_b64 v[{132+4*(i%8)}:{135+4*(i%8)}], v5 offset0:{(i%8)*2} offset1:{(i%8)*2+1}",
            "Z": f"ds_write_b128 v4, v[48:51] offset:{(i%8)*1024}", "z": f"ds_write2st64_b64 v5, v[48:49], v[50:51] offset0:{(i%8)*2} offset1:{(i%8)*2+1}", "u": f"ds_write_b32 v5, v48 offset:{(i%8)*512}",
            "P": f"v_permlane16_swap_b32 v{r}, v{r+30}", "M": "s_add_u32 m0, s54, 16384", "d": f"ds_read_b64 v[{132+4*(i%8)}:{133+4*(i%8)}], v5 offset:{(i%8)*512}",
            "K": f"v_pk_add_f32 v[{100+2*(i%12)}:{101+2*(i%12)}], v[{100+2*(i%12)}:{101+2*(i%12)}], v[2:3]", "a": f"ds_add_f32 v5, v48 offset:{(i%8)*512}", "k": f"ds_pk_add_bf16 v5, v48 offset:{(i%8)*512}"}[c]
o = ["s_load_dwordx2 s[4:5], s[0:1], 104", "s_mov_b32 s6, 65536", "s_mov_b32 s7, 0x00020000", "v_and_b32 v0, 63, v0", "v_lshlrev_b32 v4, 4, v0", "v_lshlrev_b32 v5, 3, v0", "v_mov_b32 v1, 0", "v_mov_b32 v2, 1.0", "v_mov_b32 v3, 0", "s_mov_b32 m0, 16384", "s_mov_b32 s54, 0", "s_mov_b64 vcc, 0", "s_waitcnt lgkmcnt(0)"]
for n, p in enumerate(pats):
    gs = p.split("/")
    o += ["s_mov_b32 s20, 3", f"L{n}:", "s_waitcnt vmcnt(0) lgkmcnt(0)", "s_barrier", "s_memtime s[30:31]", "s_waitcnt lgkmcnt(0)"]
    for i in range(96):
        a = 8 + 4 * (i % 4)
        o.append(f"v_mfma_f32_16x16x32_bf16 v[{a}:{a+3}], v[40:43], v[44:47], v[{a}:{a+3}]")
        o += [ins(c, i, j) for j, c in enumerate(gs[i % len(gs)])]
    o += ["s_memtime s[32:33]", "s_waitcnt lgkmcnt(0)", "s_sub_u32 s32, s32, s30", f"v_writelane_b32 v1, s32, {n}", "s_sub_u32 s20, s20, 1", "s_cmp_lg_u32 s20, 0", f"s_cbranch_scc1 L{n}"]
o += ["Lend:", "v_lshlrev_b32 v6, 2, v0", "s_waitcnt vmcnt(0)", "buffer_store_dword v1, v6, s[4:7], 0 offen", "s_waitcnt vmcnt(0)", "s_endpgm"]
open("mb.s", "w").write("; @launch grid=(1,1,1) block=(256,1,1) lds=65536\n" + '.amdgcn_target "amdgcn-amd-amdhsa--gfx950"\n.text\n' + head("mb_kernel") + "\n" + "\n".join(o) + "\n" + kd("mb_kernel", 512, 102, 256))
if len(sys.argv) > 2:
    from host import *
    from host import _check, _hip
    ws = DeviceBuffer(1 << 20); memset(ws, 0)
    k, g, b, lds = build("mb.s", "mb_kernel")
    k.launch(g, b, kargs([ws.ptr] * 14), lds); sync()
    a = np.empty(64, np.uint32); _check(_hip.hipMemcpy(a.ctypes.data_as(ctypes.c_void_p), ctypes.c_void_p(ws.ptr), 256, 2))
    print(" ".join(f"{p}:{a[n]/96:.1f}" for n, p in enumerate(pats)))
```
